```python
import torch

def _softmax(x, axis=-1):
    return torch.softmax(x, dim=axis)

def _gelu(x):
    return torch.nn.functional.gelu(x, approximate='tanh')

def _silu(x):
    return torch.nn.functional.silu(x)

def _sigmoid(x):
    return torch.sigmoid(x)

def _layernorm(x, axis=-1, eps=1e-05):
    m = x.mean(dim=axis, keepdim=True)
    v = x.var(dim=axis, keepdim=True, unbiased=False)
    return (x - m) / torch.sqrt(v + eps)

def _scatter_add(tgt, idx, src, axis=0):
    return tgt.clone().index_add_(axis, idx, src)

def _segment_sum(src, seg, n):
    out = torch.zeros((n,) + src.shape[1:], dtype=src.dtype)
    return out.index_add_(0, seg, src)

def _pad(x, pw):
    flat = tuple((v for pair in reversed(pw) for v in pair))
    return torch.nn.functional.pad(x, flat)
kernel_name = 'recurrent_scan__memory_aug_recurrent_mem_tr__dense_activation_squared_relu__prompt'

def setup_inputs():

    _w = lambda a: (lambda t: t.to(torch.bfloat16) if t.is_floating_point() else t)(torch.as_tensor(a))

    def _A_setup():
        B, S, Dm = (1, 2048, 640)
        H, Dh = (32, 192)
        M, seg = (8, 32)
        seg = min(seg, S)
        S = S // seg * seg
        return {'x': _w((lambda *s: torch.randn(*s, dtype=torch.bfloat16) * 0.05)(B, S, Dm)), 'mem0': _w((lambda *s: torch.randn(*s, dtype=torch.bfloat16) * 0.05)(B, M, Dm)), 'Wq': _w((lambda *s: torch.randn(*s, dtype=torch.bfloat16) * 1.6)(Dm, H, Dh) * Dm ** (-0.5)), 'Wk': _w((lambda *s: torch.randn(*s, dtype=torch.bfloat16) * 1.6)(Dm, H, Dh) * Dm ** (-0.5)), 'Wv': _w((lambda *s: torch.randn(*s, dtype=torch.bfloat16) * 0.05)(Dm, H, Dh) * Dm ** (-0.5)), 'Wo': _w((lambda *s: torch.randn(*s, dtype=torch.bfloat16) * 0.05)(H, Dh, Dm) * (H * Dh) ** (-0.5)), 'seg_len': seg}
    _A_in = _A_setup()

    def _B_setup():
        B, S, D, F = (1, 2048, 640, 1536)
        return {'x': _w((lambda *s: torch.randn(*s, dtype=torch.bfloat16) * 0.05)(B, S, D)), 'w1': _w((lambda *s: torch.randn(*s, dtype=torch.bfloat16) * 0.05)(D, F)), 'b1': _w((lambda *s: torch.randn(*s, dtype=torch.bfloat16) * 0.4)(F)), 'w2': _w((lambda *s: torch.randn(*s, dtype=torch.bfloat16) * 0.05)(F, D)), 'b2': _w((lambda *s: torch.randn(*s, dtype=torch.bfloat16) * 1.6)(D))}
    _B_in = _B_setup()
    return {'A_x': _A_in['x'], 'A_mem0': _A_in['mem0'], 'A_Wq': _A_in['Wq'], 'A_Wk': _A_in['Wk'], 'A_Wv': _A_in['Wv'], 'A_Wo': _A_in['Wo'], 'A_seg_len': _A_in['seg_len'], 'B_x': _B_in['x'], 'B_w1': _B_in['w1'], 'B_b1': _B_in['b1'], 'B_w2': _B_in['w2'], 'B_b2': _B_in['b2']}

def reference(A_x, A_mem0, A_Wq, A_Wk, A_Wv, A_Wo, A_seg_len, B_x, B_w1, B_b1, B_w2, B_b2):

    def _A_ref(x, mem0, Wq, Wk, Wv, Wo, seg_len):
        B, S, Dm = x.shape
        H, Dh = (Wq.shape[1], Wq.shape[2])
        M = mem0.shape[1]
        scale = Dh ** (-0.5)
        n_seg = S // seg_len
        L = M + seg_len
        idx = torch.arange(L)
        mask = (idx[:, None] < M) | (idx[:, None] >= idx[None, :])
        mem = mem0
        outs = []
        for s in range(n_seg):
            xs = x[:, s * seg_len:(s + 1) * seg_len, :].clone()
            h = torch.concatenate([mem, xs], axis=1)
            q = torch.einsum('btd,dhe->bhte', h, Wq)
            k = torch.einsum('btd,dhe->bhte', h, Wk)
            v = torch.einsum('btd,dhe->bhte', h, Wv)
            scores = torch.einsum('bhqe,bhke->bhqk', q, k) * scale
            scores = torch.where(mask[None, None], scores, -1000000000.0)
            p = _softmax(scores, axis=-1)
            o = torch.einsum('bhqk,bhke->bhqe', p, v)
            o = torch.einsum('bhte,hed->btd', o, Wo)
            mem = o[:, :M, :].clone()
            outs.append(o[:, M:, :])
        return torch.concatenate(outs, axis=1)

    def _B_ref(x, w1, b1, w2, b2):
        h = torch.einsum('bsd,df->bsf', x, w1) + b1
        zero = torch.zeros_like(h)
        r = torch.where(h > zero, h, zero)
        h = r * r
        out = torch.einsum('bsf,fd->bsd', h, w2) + b2
        return out
    x = A_x
    xn = _layernorm(x, axis=-1)
    s = _A_ref(xn, A_mem0, A_Wq, A_Wk, A_Wv, A_Wo, A_seg_len)
    g = _silu(_B_ref(xn, B_w1, B_b1, B_w2, B_b2))
    return x + s * g
```

```python
class Asm:
    def __init__(self):
        self.lines = []
        self._lab = 0

    def __call__(self, s):
        for ln in s.split("\n"):
            ln = ln.strip()
            if ln:
                self.lines.append("  " + ln)

    def label(self, name):
        self.lines.append(name + ":")

    def newlabel(self, stem="L"):
        self._lab += 1
        return f"{stem}_{self._lab}"

    def comment(self, s):
        self.lines.append("  ; " + s)

    def nop(self, n):
        while n > 0:
            k = min(n, 16)
            self(f"s_nop {k - 1}")
            n -= k

    def text(self):
        return "\n".join(self.lines) + "\n"


def v(i, n=1):
    return f"v{i}" if n == 1 else f"v[{i}:{i + n - 1}]"


def a(i, n=1):
    return f"a{i}" if n == 1 else f"a[{i}:{i + n - 1}]"


def s(i, n=1):
    return f"s{i}" if n == 1 else f"s[{i}:{i + n - 1}]"


class Alloc:
    def __init__(self, lo, hi):
        self.p = lo
        self.hi = hi

    def __call__(self, n=1, align=1):
        if n >= 2 and align < 2:
            align = 2
        self.p = (self.p + align - 1) // align * align
        r = self.p
        self.p += n
        assert self.p <= self.hi, f"out of registers: {self.p} > {self.hi}"
        return r
```

```python
import sys
from gen_common import *
from gen_init import gen_init
from gen_work import *
try:
    from gen_rec import *
except ImportError:
    gen_a = None
try:
    from gen_post import *
except ImportError:
    gen_post = None

def build_text(opts={}):
    A = Asm()
    import gen_common as gc
    gc.STAMP = bool(opts.get("stamp"))
    hdr = f"""; recurrent memory transformer + squared-relu FFN, persistent role-specialised kernel
; @launch kernel=init_kernel grid=(256,1,1) block=(256,1,1) lds=0
; @launch kernel={KN} grid=(256,1,1) block=(256,1,1) lds={LDS_TOTAL}
.amdgcn_target "amdgcn-amd-amdhsa--gfx950"
.text
.globl init_kernel
.p2align 8
.type init_kernel,@function
init_kernel:
"""
    gen_init(A)
    A.lines.append(f".globl {KN}\n.p2align 8\n.type {KN},@function\n{KN}:")
    A("s_cmp_ge_u32 s2, 256")
    A("s_cbranch_scc1 R_END")
    make_srd(A, SWS, 112, 0x10000000)
    A(f"""v_lshrrev_b32 v2, 6, v0
    v_and_b32 v{VL}, 63, v0
    s_nop 0
    v_readfirstlane_b32 s{SWAVE}, v2
    s_waitcnt lgkmcnt(0)""")
    gc.stamp(A, 0)
    A("s_waitcnt vmcnt(0)")
    tab = [("R_A", 32), ("R_B", 32), ("R_C", 40), ("R_T1", 104), ("R_T2", 40), ("R_POST", 8)]
    lo = 0
    for lab, n in tab:
        A(f"s_sub_u32 s{SUNIT}, s2, {lo}")
        A(f"s_cmp_lt_u32 s{SUNIT}, {n}")
        Ln = A.newlabel("D")
        A(f"s_cbranch_scc0 {Ln}")
        A(f"s_getpc_b64 s[20:21]")
        Lp = A.newlabel("P")
        A.label(Lp)
        A(f"s_add_u32 s20, s20, {lab}-{Lp}")
        A(f"s_addc_u32 s21, s21, 0")
        A(f"s_setpc_b64 s[20:21]")
        A.label(Ln)
        lo += n
    A.label("R_END")
    A("s_endpgm")
    if gen_a and not opts.get("norec"):
        gen_c(A, opts)
        gen_a(A, opts)
        gen_b(A, opts)
    else:
        for l in ("R_A", "R_B", "R_C"):
            A.label(l)
        A("s_endpgm")
    gen_t1(A, "R_POST")
    gen_t2(A, "R_POST")
    if gen_post and not opts.get("nopost"):
        gen_post(A, opts)
    else:
        A.label("R_POST")
        A("s_endpgm")
    return hdr + A.text() + '.section .rodata,"a"\n.p2align 6\n' + kdesc("init_kernel", 128, 128) + ".p2align 6\n" + kdesc(KN)

if __name__ == "__main__":
    txt = build_text()
    out = sys.argv[1] if len(sys.argv) > 1 else "cdna_kernels/" + KN[:-7] + ".s"
    open(out, "w").write(txt)
    print("wrote", out, len(txt))
```

```python
from asmlib import *
KN = "recurrent_scan__memory_aug_recurrent_mem_tr__dense_activation_squared_relu__prompt_kernel"
FL_T1 = 0; FL_T2 = 2048; FL_PX = 3072; FL_B = 3584; FL_TICKET = 4608; FL_SIZE = 8192
NRING = 4
MEMR = 0x10000; MEM_SLOT = 0x4000
PR = 0x20000; P_SLOT = 0x8000; P_M = 0x4000
VOMR = 0x40000; VOM_SLOT = 0x50000
XNF = 0x200000
PXX = 0x500000
PXM = 0x900000
VOMC = 0xA00000
T1O = 0x2000000
VOX = 0x7000000
assert VOMC + 64 * VOM_SLOT <= T1O and T1O + 104 * 64 * 12288 <= VOX and VOX + 64 * 1600 * 1024 <= 0x10000000
DBGW = 0xF000000
LDS_TOTAL = 160 * 1024
SWS = 4
SR1 = 8
SR2 = 12
SWAVE = 16; SUNIT = 17
SPIN_MAX = 200000

def make_srd(A, sreg, karg_off, nbytes):
    A(f"s_load_dwordx2 {s(sreg,2)}, s[0:1], {karg_off}")
    A(f"s_mov_b32 s{sreg+2}, {nbytes}")
    A(f"s_mov_b32 s{sreg+3}, 0x20000")

def load_weights(A, batches, nbuf, bufsz, lds0, vt, st):
    def issue(i):
        b = batches[i]; buf = lds0 + (i % nbuf) * bufsz; NL = b['NL']
        A(f"s_mul_i32 s{st+1}, s{SWAVE}, {NL*1024}")
        for kbl in range(b['nkb']):
            for lam in range(NL):
                A(f"s_add_u32 s{st}, s{b['sbase']}, {(b['row0'] + 32*kbl) * b['stride'] + lam*128}")
                A(f"s_add_u32 m0, s{st+1}, {buf + (4*kbl*NL + lam)*1024}")
                A(f"buffer_load_dwordx4 v{b['vdma']}, {s(b['srd'],4)}, s{st} offen lds")
        return b['nkb'] * NL
    cnt = [b['nkb'] * b['NL'] for b in batches]
    n = len(batches)
    for i in range(min(nbuf - 1, n)): issue(i)
    for i in range(n):
        younger = sum(cnt[i+1:min(i + nbuf - 1, n)])
        A(f"s_waitcnt vmcnt({min(younger,63)})")
        A("s_barrier")
        if i + nbuf - 1 < n: issue(i + nbuf - 1)
        b = batches[i]; buf = lds0 + (i % nbuf) * bufsz; NL = b['NL']
        for k, (va, dest) in enumerate(b['tiles']):
            A(f"v_add_u32 v{vt+k}, {buf}, v{va}")
        for k, (va, dest) in enumerate(b['tiles']):
            for kbl in range(b['nkb']):
                for u in range(2):
                    A(f"ds_read_b64_tr_b16 {dest(kbl,u)}, v{vt+k} offset:{4*kbl*NL*1024 + u*512}")
        A("s_waitcnt lgkmcnt(0)")
        if b.get('post'): b['post']()
    A("s_barrier")

def wl_addr_setup(A, vlane, vdma, stride, NL, tile_regs, tile0_mul, sigma, vt):
    t0, t1, t2, t3 = vt, vt+1, vt+2, vt+3
    A(f"v_lshrrev_b32 v{t0}, 3, v{vlane}")
    A(f"s_lshl_b32 s20, s{SWAVE}, 3")
    A(f"v_add_u32 v{t0}, s20, v{t0}")
    A(f"v_mul_u32_u24 v{t0}, {stride}, v{t0}")
    A(f"v_and_b32 v{t1}, 7, v{vlane}")
    A(f"s_lshl_b32 s20, s{SWAVE}, 1")
    A(f"v_xor_b32 v{t1}, s20, v{t1}")
    A(f"v_lshl_add_u32 v{vdma}, v{t1}, 4, v{t0}")
    A(f"v_lshrrev_b32 v{t0}, 4, v{vlane}")
    if sigma:
        A(f"v_and_b32 v{t1}, 1, v{t0}")
        A(f"v_lshrrev_b32 v{t0}, 1, v{t0}")
        A(f"v_lshl_or_b32 v{t0}, v{t1}, 1, v{t0}")
    A(f"v_mul_u32_u24 v{t1}, {NL*1024}, v{t0}")
    A(f"v_bfe_u32 v{t2}, v{vlane}, 2, 2")
    A(f"v_lshl_add_u32 v{t1}, v{t2}, 7, v{t1}")
    A(f"v_and_b32 v{t2}, 3, v{vlane}")
    A(f"v_lshl_add_u32 v{t1}, v{t2}, 3, v{t1}")
    for k, r in enumerate(tile_regs):
        A(f"s_mul_i32 s20, s{SWAVE}, {tile0_mul}")
        A(f"s_add_u32 s20, s20, {k}")
        A(f"s_and_b32 s21, s20, 3")
        A(f"s_lshr_b32 s20, s20, 2")
        A(f"s_lshl_b32 s20, s20, 10")
        A(f"v_xor_b32 v{t2}, s21, v{t0}")
        A(f"v_lshl_add_u32 v{t2}, v{t2}, 5, v{t1}")
        A(f"v_add_u32 v{r}, s20, v{t2}")

def kdesc(name, vg=512, acc=256):
    return f""".amdhsa_kernel {name}
  .amdhsa_next_free_vgpr {vg}
  .amdhsa_next_free_sgpr 102
  .amdhsa_accum_offset {acc}
  .amdhsa_group_segment_fixed_size 0
  .amdhsa_kernarg_size 120
  .amdhsa_user_sgpr_count 2
  .amdhsa_user_sgpr_kernarg_segment_ptr 1
  .amdhsa_system_sgpr_workgroup_id_x 1
.end_amdhsa_kernel
"""

STAMP = False
def stamp(A, idx, vt=250, sreg=None):
    if not STAMP: return
    A("s_memrealtime s[98:99]")
    A("s_lshl_b32 s100, s2, 12")
    A(f"s_lshl_b32 s101, s{SWAVE}, 10")
    A("s_add_u32 s100, s100, s101")
    A(f"s_add_u32 s100, s100, {DBGW + idx*4}")
    if sreg is not None: A(f"s_add_u32 s100, s100, s{sreg}")
    A("s_waitcnt lgkmcnt(0)")
    A(f"v_mov_b32 v{vt}, s98")
    A(f"v_mov_b32 v{vt+1}, 0")
    A(f"buffer_store_dword v{vt}, v{vt+1}, {s(SWS,4)}, s100 offen")
```

```python
from gen_common import *
def gen_init(A):
    A("s_cmp_ge_u32 s2, 256")
    A("s_cbranch_scc1 I_end")
    make_srd(A, SWS, 112, 0x10000000)
    make_srd(A, SR1, 0, 2048*1280)
    make_srd(A, SR2, 8, 8*1280)
    A("s_cmp_ge_u32 s2, 128")
    A("s_cbranch_scc1 I_fill")
    A("""v_lshrrev_b32 v1, 4, v0
    s_lshl_b32 s20, s2, 4
    v_add_u32 v1, s20, v1
    v_and_b32 v2, 15, v0
    v_mul_u32_u24 v3, 1280, v1
    v_lshl_add_u32 v3, v2, 4, v3
    s_waitcnt lgkmcnt(0)""")
    for i in range(5):
        A(f"buffer_load_dwordx4 {v(8+4*i,4)}, v3, {s(SR1,4)}, 0 offen offset:{256*i}")
    A("""v_lshrrev_b32 v4, 5, v1
    v_bfe_u32 v5, v1, 2, 1
    v_lshl_add_u32 v4, v4, 1, v5
    v_mul_u32_u24 v4, 20480, v4
    v_bfe_u32 v5, v1, 3, 2
    v_and_b32 v6, 3, v1
    v_lshl_add_u32 v5, v5, 2, v6
    v_lshl_add_u32 v4, v5, 4, v4
    v_lshrrev_b32 v5, 2, v2
    v_lshl_add_u32 v4, v5, 10, v4
    v_and_b32 v5, 3, v2
    v_lshl_add_u32 v4, v5, 8, v4
    s_waitcnt vmcnt(0)""")
    for i in range(20):
        A(f"v_lshlrev_b32 v{32+2*i}, 16, v{8+i}")
        A(f"v_and_b32 v{33+2*i}, 0xffff0000, v{8+i}")
    A("v_add_f32 v5, v32, v33")
    for i in range(2, 40): A(f"v_add_f32 v5, v5, v{32+i}")
    def red(r):
        for k in (8, 4, 2, 1):
            A("s_nop 1")
            A(f"v_add_f32 v{r}, v{r}, v{r} row_ror:{k} row_mask:0xf bank_mask:0xf")
    red(5)
    A(f"v_mul_f32 v5, {1.0/640!r}, v5")
    A("v_sub_f32 v6, v32, v5")
    A("v_mul_f32 v7, v6, v6")
    for i in range(1, 40):
        A(f"v_sub_f32 v6, v{32+i}, v5")
        A("v_fmac_f32 v7, v6, v6")
    red(7)
    A(f"v_mul_f32 v7, {1.0/640!r}, v7")
    A("""v_cvt_pk_bf16_f32 v5, v5, v7
    v_and_b32 v7, 0xffff0000, v5
    v_lshlrev_b32 v5, 16, v5
    v_add_f32 v7, 0x3727c5ac, v7
    v_cvt_pk_bf16_f32 v7, v7, v7
    v_and_b32 v7, 0xffff0000, v7
    v_sqrt_f32 v7, v7
    s_nop 0
    v_cvt_pk_bf16_f32 v7, v7, v7
    v_and_b32 v7, 0xffff0000, v7
    v_rcp_f32 v6, v7
    s_nop 0
    v_fma_f32 v28, -v7, v6, 1.0
    v_fmac_f32 v6, v28, v6""")
    for i in range(20):
        a_, b_ = 32+2*i, 33+2*i
        A(f"v_sub_f32 v{a_}, v{a_}, v5")
        A(f"v_sub_f32 v{b_}, v{b_}, v5")
        A(f"v_cvt_pk_bf16_f32 v{b_}, v{a_}, v{b_}")
        A(f"v_lshlrev_b32 v{a_}, 16, v{b_}")
        A(f"v_and_b32 v{b_}, 0xffff0000, v{b_}")
        A(f"v_mul_f32 v28, v{a_}, v6")
        A(f"v_mul_f32 v29, v{b_}, v6")
        A(f"v_fma_f32 v{a_}, -v28, v7, v{a_}")
        A(f"v_fma_f32 v{b_}, -v29, v7, v{b_}")
        A(f"v_fmac_f32 v28, v{a_}, v6")
        A(f"v_fmac_f32 v29, v{b_}, v6")
        A(f"v_cvt_pk_bf16_f32 v{8+i}, v28, v29")
    A(f"s_mov_b32 s20, {XNF}")
    for i in range(5):
        A(f"buffer_store_dwordx4 {v(8+4*i,4)}, v4, {s(SWS,4)}, s20 offen")
        A(f"s_add_u32 s20, s20, 4096")
    A("s_endpgm")
    A.label("I_fill")
    lo = MEMR + MEM_SLOT; hi = VOMR + NRING * VOM_SLOT
    A(f"""s_sub_u32 s20, s2, 128
    s_lshl_b32 s20, s20, 12
    v_lshlrev_b32 v1, 4, v0
    v_add_u32 v1, s20, v1
    v_mov_b32 v4, -1
    v_mov_b32 v5, -1
    v_mov_b32 v6, -1
    v_mov_b32 v7, -1
    s_waitcnt lgkmcnt(0)""")
    off = lo
    while off < hi:
        A(f"v_cmp_gt_u32 vcc, {hi - off}, v1")
        A("s_and_saveexec_b64 s[22:23], vcc")
        A(f"s_mov_b32 s21, {off}")
        A(f"buffer_store_dwordx4 v[4:7], v1, {s(SWS,4)}, s21 offen")
        A("s_mov_b64 exec, s[22:23]")
        off += 512 * 1024
    A("s_cmp_eq_u32 s2, 128")
    A("s_cbranch_scc0 I_mem0")
    A("""v_mov_b32 v4, 0
    v_mov_b32 v5, 0
    v_mov_b32 v6, 0
    v_mov_b32 v7, 0""")
    A(f"buffer_store_dwordx4 v[4:7], v1, {s(SWS,4)}, 0 offen")
    A(f"s_movk_i32 s21, 4096")
    A(f"buffer_store_dwordx4 v[4:7], v1, {s(SWS,4)}, s21 offen")
    A("s_endpgm")
    A.label("I_mem0")
    A("""s_sub_u32 s20, s2, 129
    s_cmp_ge_u32 s20, 3
    s_cbranch_scc1 I_end
    s_lshl_b32 s20, s20, 8
    v_add_u32 v1, s20, v0
    v_cmp_gt_u32 vcc, 640, v1
    s_and_b64 exec, exec, vcc
    s_cbranch_execz I_end
    v_lshlrev_b32 v2, 1, v1""")
    for r in range(8):
        A(f"s_movk_i32 s21, {r*1280}")
        A(f"buffer_load_ushort v{8+r}, v2, {s(SR2,4)}, s21 offen")
    A("s_waitcnt vmcnt(0)")
    for r in range(4):
        A(f"v_lshl_or_b32 v{4+r}, v{9+2*r}, 16, v{8+2*r}")
    A("v_lshlrev_b32 v2, 4, v1")
    A(f"s_mov_b32 s21, {MEMR}")
    A(f"buffer_store_dwordx4 v[4:7], v2, {s(SWS,4)}, s21 offen")
    A.label("I_end")
    A("s_endpgm")
```

```python
from gen_common import *
import gen_common as gc
from gen_work import VL, spin_guard
WS = s(SWS, 4)
MM = "v_mfma_f32_16x16x32_bf16"
SR3 = 40
def gen_post(A, opts):
    A.label("R_POST")
    make_srd(A, SR1, 0, 2048*1280)
    make_srd(A, SR2, 96, 2048*1280)
    make_srd(A, SR3, 88, 1280)
    vL16, vZ, vTk, vF2, vF8, vF4, vMin = 2, 3, 4, 5, 6, 7, 8
    vX = [9, 10]; vM = [11, 12]; vO = [13, 14]; vB2 = 15
    ID = 16
    acc = 24
    accF = 40
    FLT = 56
    RING = 64; NS = 12
    g, n, t, gi = 56, 57, 58, 59
    A(f"""v_lshlrev_b32 v{vL16}, 4, v{VL}
    v_mov_b32 v{vZ}, 0
    v_lshrrev_b32 v{g}, 4, v{VL}
    v_and_b32 v{n}, 15, v{VL}
    v_lshrrev_b32 v{gi}, 2, v{n}
    v_min_u32 v{vF2}, 39, v{VL}
    v_lshlrev_b32 v{vF2}, 4, v{vF2}
    v_lshlrev_b32 v{vF8}, 3, v{VL}
    v_lshlrev_b32 v{vF4}, 2, v{VL}
    v_mov_b32 v{vMin}, 0
    v_and_b32 v60, 1, v{gi}
    v_lshlrev_b32 v60, 3, v60
    v_and_b32 v61, 3, v{n}
    v_add_u32 v60, v60, v61
    v_lshrrev_b32 v62, 1, v{gi}
    v_mul_u32_u24 v{vX[0]}, 40960, v62
    v_lshl_add_u32 v{vX[0]}, v60, 6, v{vX[0]}
    v_lshl_add_u32 v{vX[0]}, v{g}, 4, v{vX[0]}
    v_add_u32 v{vX[1]}, 256, v{vX[0]}
    v_lshlrev_b32 v{vM[0]}, 13, v62
    v_lshl_add_u32 v{vM[0]}, v60, 4, v{vM[0]}
    v_lshl_add_u32 v{vM[0]}, v{g}, 8, v{vM[0]}
    v_add_u32 v{vM[1]}, 64, v{vM[0]}
    v_lshl_add_u32 v{t}, v{gi}, 3, v61
    v_mul_u32_u24 v{vO[0]}, 1280, v{t}
    v_lshl_add_u32 v{vO[0]}, v{g}, 4, v{vO[0]}
    v_add_u32 v{vO[1]}, {4*1280}, v{vO[0]}
    v_lshlrev_b32 v{vB2}, 4, v{g}""")
    A(f"""v_and_b32 v{t}, 1, v{n}
    v_cmp_eq_u32 vcc, 1, v{t}
    v_mov_b32 v62, 0x3f80
    v_mov_b32 v63, 0x3f800000
    v_cndmask_b32 v62, v62, v63, vcc
    v_cmp_eq_u32 vcc, v{g}, v{gi}
    v_cndmask_b32 v62, v{vZ}, v62, vcc
    v_bfe_u32 v{t}, v{n}, 1, 1
    v_cmp_eq_u32 vcc, 0, v{t}
    v_cndmask_b32 v{ID}, v{vZ}, v62, vcc
    v_cndmask_b32 v{ID+1}, v62, v{vZ}, vcc
    v_mov_b32 v{ID+2}, 0
    v_mov_b32 v{ID+3}, 0
    v_mov_b32 v{ID+4}, 0
    v_mov_b32 v{ID+5}, 0
    v_mov_b32 v{ID+6}, v{ID}
    v_mov_b32 v{ID+7}, v{ID+1}
    s_mov_b32 s32, 0
    s_movk_i32 s33, {FL_TICKET}
    s_waitcnt lgkmcnt(0)""")
    def ticket():
        A(f"""s_mov_b64 exec, 1
        v_mov_b32 v{vTk}, 1
        buffer_atomic_add v{vTk}, v{vZ}, {WS}, s33 offen sc0 sc1
        s_mov_b64 exec, -1""")
    ticket()
    A.label("P_loop")
    A(f"""s_waitcnt vmcnt(0)
    v_readfirstlane_b32 s30, v{vTk}
    s_cmp_ge_u32 s30, 1280
    s_cbranch_scc1 P_end
    s_mul_i32 s31, s30, 3277
    s_lshr_b32 s31, s31, 16
    s_mul_i32 s20, s31, 20
    s_sub_u32 s30, s30, s20""")
    A.label("P_fl")
    A(f"v_cmp_lt_u32 vcc, s31, v{vMin}")
    A("s_cmp_eq_u64 vcc, exec")
    A("s_cbranch_scc1 P_go")
    spin_guard(A, 32, "P_go")
    A(f"""s_sleep 4
    s_movk_i32 s20, {FL_T2}
    buffer_load_dwordx4 {v(FLT,4)}, v{vF2}, {WS}, s20 offen sc1
    buffer_load_dwordx2 {v(FLT+4,2)}, v{vF8}, {WS}, s20 offen offset:{FL_B-FL_T2} sc1
    buffer_load_dword v{FLT+6}, v{vF4}, {WS}, s20 offen offset:{FL_PX-FL_T2} sc1
    s_waitcnt vmcnt(0)
    v_min3_u32 v{vMin}, v{FLT}, v{FLT+1}, v{FLT+2}
    v_min3_u32 v{vMin}, v{vMin}, v{FLT+3}, v{FLT+4}
    v_min3_u32 v{vMin}, v{vMin}, v{FLT+5}, v{FLT+6}
    s_branch P_fl""")
    A.label("P_go")
    ticket()
    A(f"""s_mul_i32 s24, s31, {1600*1024}
    s_mul_i32 s20, s30, {2*40960}
    s_add_u32 s24, s24, s20
    s_add_u32 s24, s24, {VOX}
    s_lshl_b32 s25, s31, 16
    s_add_u32 s25, s25, {PXX}
    s_mul_i32 s26, s31, {VOM_SLOT}
    s_lshl_b32 s20, s30, 14
    s_add_u32 s26, s26, s20
    s_add_u32 s26, s26, {VOMC}
    s_lshl_b32 s27, s31, 14
    s_add_u32 s27, s27, {PXM}
    s_mul_i32 s28, s31, {32*1280}
    s_lshl_b32 s29, s30, 6
    s_add_u32 s28, s28, s29""")
    steps = [('f', i) for i in range(8)] + [('x', i) for i in range(32)] + [('m', i) for i in range(8)]
    nl = []
    def ld(k):
        ty, i = steps[k]; o = RING + 16*(k % NS)
        if ty == 'f':
            A(f"s_add_u32 s20, s24, {(32+i)*1024}")
            for dt in range(2): A(f"buffer_load_dwordx4 {v(o+4*dt,4)}, v{vX[dt]}, {WS}, s20 offen sc1")
            nl.append(2)
        else:
            A(f"s_add_u32 s20, s{24 if ty == 'x' else 26}, {i*1024}")
            A(f"s_add_u32 s21, s{25 if ty == 'x' else 27}, {i*2048}")
            for dt in range(2): A(f"buffer_load_dwordx4 {v(o+4*dt,4)}, v{(vX if ty == 'x' else vM)[dt]}, {WS}, s20 offen sc1")
            for tt in range(2): A(f"buffer_load_dwordx4 {v(o+8+4*tt,4)}, v{vL16}, {WS}, s21 offen offset:{tt*1024} sc1")
            nl.append(4)
    PD = NS - 1
    for k in range(PD): ld(k)
    XR = 56
    for k, (ty, i) in enumerate(steps):
        if k + PD < len(steps): ld(k + PD)
        elif k + PD == len(steps):
            o = RING + 16*((k + PD) % NS); XR = o
            for tt in range(2): A(f"buffer_load_dwordx4 {v(o+4*tt,4)}, v{vO[tt]}, {s(SR1,4)}, s28 offen")
            A(f"buffer_load_dwordx4 {v(o+8,4)}, v{vB2}, {s(SR3,4)}, s29 offen")
            nl.append(3)
        A(f"s_waitcnt vmcnt({sum(nl[k+1:])})")
        o = RING + 16*(k % NS)
        for dt in range(2):
            for tt in range(2):
                c = v((accF if ty == 'f' else acc) + 4*(2*dt+tt), 4)
                first = (k == 0 or k == 8)
                b = v(ID+4*tt, 4) if ty == 'f' else v(o+8+4*tt, 4)
                A(f"{MM} {c}, {v(o+4*dt,4)}, {b}, {'0' if first else c}")
    A("s_waitcnt vmcnt(0)")
    T = RING + 16*((len(steps) + 1) % NS)
    T = RING + 16*1
    assert XR == RING
    B2 = T
    for j in range(4):
        A(f"v_lshlrev_b32 v{B2+2*j}, 16, v{XR+8+j}")
        A(f"v_and_b32 v{B2+2*j+1}, 0xffff0000, v{XR+8+j}")
    U = T + 8
    def rnd(a_, b_):
        A(f"v_cvt_pk_bf16_f32 v{b_}, v{a_}, v{b_}")
        A(f"v_lshlrev_b32 v{a_}, 16, v{b_}")
        A(f"v_and_b32 v{b_}, 0xffff0000, v{b_}")
    for tt in range(2):
        for dt in range(2):
            f = accF + 4*(2*dt+tt); c = acc + 4*(2*dt+tt)
            for j in (0, 2): rnd(f+j, f+j+1)
            for j in range(4): A(f"v_add_f32 v{f+j}, v{f+j}, v{B2+4*dt+j}")
            for j in (0, 2): rnd(f+j, f+j+1)
            for j in range(4): A(f"v_mul_f32 v{U+j}, 0xbfb8aa3b, v{f+j}")
            for j in range(4): A(f"v_exp_f32 v{U+j}, v{U+j}")
            A("s_nop 0")
            for j in range(4): A(f"v_add_f32 v{U+j}, 1.0, v{U+j}")
            for j in range(4): A(f"v_rcp_f32 v{U+j}, v{U+j}")
            A("s_nop 0")
            for j in range(4): A(f"v_mul_f32 v{f+j}, v{f+j}, v{U+j}")
            for j in (0, 2): rnd(f+j, f+j+1)
            for j in (0, 2): rnd(c+j, c+j+1)
            for j in range(4): A(f"v_mul_f32 v{c+j}, v{c+j}, v{f+j}")
            for j in (0, 2): rnd(c+j, c+j+1)
            for j in range(2):
                xr = XR + 4*tt + 2*dt + j
                A(f"v_lshlrev_b32 v{U}, 16, v{xr}")
                A(f"v_and_b32 v{U+1}, 0xffff0000, v{xr}")
                A(f"v_add_f32 v{U}, v{U}, v{c+2*j}")
                A(f"v_add_f32 v{U+1}, v{U+1}, v{c+2*j+1}")
                A(f"v_cvt_pk_bf16_f32 v{xr}, v{U}, v{U+1}")
        A(f"buffer_store_dwordx4 {v(XR+4*tt,4)}, v{vO[tt]}, {s(SR2,4)}, s28 offen")
    A("s_branch P_loop")
    A.label("P_end")
    gc.stamp(A, 3)
    A("s_endpgm")
```

```python
from gen_common import *
import gen_common as gc
from gen_work import VL, spin_guard
import math
CEXP = (192 ** -0.5) * math.log2(math.e)
SM = "v_smfmac_f32_16x16x64_bf16"
WS = s(SWS, 4)

def lane_fields(A, g, r, c):
    A(f"v_lshrrev_b32 v{g}, 4, v{VL}")
    A(f"v_bfe_u32 v{r}, v{VL}, 2, 2")
    A(f"v_and_b32 v{c}, 3, v{VL}")

def sparse_addr(A, dst, base, g, r, c, t):
    A(f"""v_lshrrev_b32 v{t}, 1, v{g}
    v_lshlrev_b32 v{dst}, 9, v{t}
    v_and_b32 v{t}, 1, v{g}
    v_lshl_add_u32 v{dst}, v{t}, 7, v{dst}
    v_lshrrev_b32 v{t}, 1, v{r}
    v_lshl_add_u32 v{dst}, v{t}, 6, v{dst}
    v_lshrrev_b32 v{t}, 1, v{c}
    v_lshl_add_u32 v{dst}, v{t}, 5, v{dst}
    v_and_b32 v{t}, 1, v{r}
    v_lshl_add_u32 v{dst}, v{t}, 4, v{dst}
    v_and_b32 v{t}, 1, v{c}
    v_lshl_add_u32 v{dst}, v{t}, 3, v{dst}
    v_add_u32 v{dst}, {base}, v{dst}""")

def idx_reg(A, dst, t):
    A(f"""v_and_b32 v{t}, 8, v{VL}
    v_cmp_eq_u32 vcc, 0, v{t}
    v_mov_b32 v{dst}, 0xeeee
    v_mov_b32 v{t}, 0x4444
    v_cndmask_b32 v{dst}, v{dst}, v{t}, vcc""")

def gather_mem(A, G, vG, vGL, smem, vmx, sspin, tag):
    L = A.newlabel(tag + "g"); Lx = A.newlabel(tag + "gx")
    A(f"s_add_u32 s20, s{smem}, 4096")
    A.label(L)
    for i in range(5):
        A(f"buffer_load_dwordx4 {v(G[i],4)}, v{vG}, {WS}, s{smem if i < 4 else 20} offen offset:{(i%4)*1024} sc1")
    for i in range(5):
        A(f"s_waitcnt vmcnt({4-i})")
        A(f"ds_write_b128 v{vGL}, {v(G[i],4)} offset:{i*1024}")
        if i == 0:
            A(f"v_max3_u32 v{vmx}, v{G[0]}, v{G[0]+1}, v{G[0]+2}")
            A(f"v_max_u32 v{vmx}, v{vmx}, v{G[0]+3}")
        else:
            A(f"v_max3_u32 v{vmx}, v{G[i]}, v{G[i]+1}, v{vmx}")
            A(f"v_max3_u32 v{vmx}, v{G[i]+2}, v{G[i]+3}, v{vmx}")
    A(f"v_cmp_eq_u32 vcc, -1, v{vmx}")
    A(f"s_cbranch_vccz {Lx}")
    spin_guard(A, sspin, Lx)
    A(f"s_branch {L}")
    A.label(Lx)
    A("s_waitcnt lgkmcnt(0)")

def ring_next(A, sreg, base, slot):
    A(f"s_add_u32 s{sreg}, s{sreg}, {slot}")
    A(f"s_cmp_eq_u32 s{sreg}, {base + NRING*slot}")
    A(f"s_cselect_b32 s{sreg}, {base}, s{sreg}")

def wait_flag4(A, fl, vz, soff, sneed, sknown, sspin, tag):
    L = A.newlabel(tag + "f"); Lx = A.newlabel(tag + "fx")
    A.label(L)
    A(f"v_min_u32 v{fl}, v{fl}, v{fl+1}")
    A(f"v_min3_u32 v{fl}, v{fl}, v{fl+2}, v{fl+3}")
    A("s_nop 0")
    A(f"v_readfirstlane_b32 s{sknown}, v{fl}")
    A(f"s_cmp_gt_u32 s{sknown}, s{sneed}")
    A(f"s_cbranch_scc1 {Lx}")
    spin_guard(A, sspin, Lx)
    A(f"buffer_load_dwordx4 {v(fl,4)}, v{vz}, {WS}, s{soff} offen sc1")
    A("s_waitcnt vmcnt(0)")
    A(f"s_branch {L}")
    A.label(Lx)

def gen_c(A, opts):
    A.label("R_C")
    vL16, vX, vIdx, vSt, vRed, vFl, vFo, vMx, vM1 = 2, 3, 4, 5, 6, 7, 8, 9, 10
    acc = 12; P = 16; PM = 32; VM = 36; VX = 44
    A(f"""v_lshlrev_b32 v{vL16}, 4, v{VL}
    v_and_b32 v20, 15, v{VL}
    v_lshrrev_b32 v21, 4, v{VL}
    v_lshlrev_b32 v{vX}, 6, v20
    v_lshl_add_u32 v{vX}, v21, 4, v{vX}
    v_lshlrev_b32 v{vSt}, 4, v20
    v_and_b32 v22, 1, v21
    v_lshl_add_u32 v{vSt}, v22, 3, v{vSt}
    v_lshrrev_b32 v22, 1, v21
    v_lshl_add_u32 v{vSt}, v22, 2, v{vSt}
    s_lshl_b32 s20, s{SUNIT}, 8
    v_add_u32 v{vSt}, s20, v{vSt}
    v_lshlrev_b32 v{vRed}, 3, v{VL}
    s_lshl_b32 s20, s{SWAVE}, 9
    v_add_u32 v23, s20, v{vRed}
    v_and_b32 v{vFo}, 31, v{VL}
    v_lshlrev_b32 v{vFo}, 2, v{vFo}
    v_mov_b32 v{vM1}, -1
    v_mov_b32 v11, v23""")
    idx_reg(A, vIdx, 20)
    A(f"""s_lshl_b32 s34, s{SWAVE}, 12
    s_lshl_b32 s35, s{SWAVE}, 10
    s_add_u32 s35, s35, {P_M}
    s_lshl_b32 s36, s{SUNIT}, 13
    s_lshl_b32 s20, s{SWAVE}, 11
    s_add_u32 s36, s36, s20
    s_mov_b32 s37, {PR}
    s_mov_b32 s38, {VOMR}
    s_mov_b32 s27, {MEMR + MEM_SLOT}
    s_mov_b32 s28, {MEMR}
    s_mul_i32 s29, s{SUNIT}, 40960
    s_lshl_b32 s20, s{SWAVE}, 13
    s_add_u32 s29, s29, s20
    s_add_u32 s29, s29, {VOX}
    s_mov_b32 s30, 0
    s_lshl_b32 s31, s{SWAVE}, 7
    s_add_u32 s31, s31, {FL_T2}
    s_mov_b32 s32, 0
    v_mov_b32 v{vFl}, 0""")
    A.label("C_loop")
    A.label("C_fl")
    A(f"v_cmp_lt_u32 vcc, s30, v{vFl}")
    A("s_cmp_eq_u64 vcc, exec")
    A("s_cbranch_scc1 C_flx")
    spin_guard(A, 32, "C_flx")
    A("s_sleep 1")
    A(f"buffer_load_dword v{vFl}, v{vFo}, {WS}, s31 offen sc1")
    A("s_waitcnt vmcnt(0)")
    A("s_branch C_fl")
    A.label("C_flx")
    A("s_add_u32 s20, s29, 4096")
    for i in range(8):
        A(f"buffer_load_dwordx4 {v(VX+4*i,4)}, v{vX}, {WS}, s{29 if i < 4 else 20} offen offset:{(i%4)*1024} sc1")
    A(f"buffer_load_dword v{vFl}, v{vFo}, {WS}, s31 offen sc1")
    A(f"s_add_u32 s29, s29, {1600*1024}")
    for i in range(4): A(f"v_mov_b32 v{acc+i}, 0")
    A("s_add_u32 s24, s37, s34")
    A("s_add_u32 s25, s37, s35")
    A("s_add_u32 s26, s38, s36")
    A.label("C_poll")
    for i in range(2):
        A(f"buffer_load_dwordx4 {v(VM+4*i,4)}, v{vL16}, {WS}, s26 offen offset:{i*1024} sc1")
    A(f"buffer_load_dwordx4 {v(PM,4)}, v{vL16}, {WS}, s25 offen sc1")
    for i in range(4):
        A(f"buffer_load_dwordx4 {v(P+4*i,4)}, v{vL16}, {WS}, s24 offen offset:{i*1024} sc1")
    A("s_waitcnt vmcnt(4)")
    A(f"v_max3_u32 v{vMx}, v{VM}, v{VM+2}, v{VM+4}")
    A(f"v_max3_u32 v{vMx}, v{vMx}, v{VM+6}, v{PM}")
    A(f"v_max_u32 v{vMx}, v{vMx}, v{PM+2}")
    for i in range(4):
        A(f"s_waitcnt vmcnt({3-i})")
        A(f"v_max3_u32 v{vMx}, v{vMx}, v{P+4*i}, v{P+4*i+2}")
    A(f"v_cmp_eq_u32 vcc, -1, v{vMx}")
    A("s_cbranch_vccz C_go")
    spin_guard(A, 32, "C_go")
    A("s_branch C_poll")
    A.label("C_go")
    A(f"{SM} {v(acc,4)}, {v(PM,4)}, {v(VM,8)}, v{vIdx}")
    for i in range(4):
        A(f"{SM} {v(acc,4)}, {v(P+4*i,4)}, {v(VX+8*i,8)}, v{vIdx}")
    A(f"s_cmp_eq_u32 s{SWAVE}, 0")
    A.nop(7)
    A(f"v_permlane32_swap_b32 v{acc}, v{acc+2}")
    A(f"v_permlane32_swap_b32 v{acc+1}, v{acc+3}")
    A("s_nop 0")
    A(f"v_add_f32 v{acc}, v{acc}, v{acc+2}")
    A(f"v_add_f32 v{acc+1}, v{acc+1}, v{acc+3}")
    A("s_cbranch_scc1 C_w0")
    A(f"ds_write_b64 v11, {v(acc,2)}")
    A("s_waitcnt lgkmcnt(0)")
    A("s_barrier")
    A("s_branch C_next")
    A.label("C_w0")
    A("s_barrier")
    for i in range(3):
        A(f"ds_read_b64 {v(P+2*i,2)}, v{vRed} offset:{512*(i+1)}")
    for i in range(3):
        A(f"s_waitcnt lgkmcnt({2-i})")
        A(f"v_add_f32 v{acc}, v{acc}, v{P+2*i}")
        A(f"v_add_f32 v{acc+1}, v{acc+1}, v{P+2*i+1}")
    A(f"v_cvt_pk_bf16_f32 v{acc}, v{acc}, v{acc+1}")
    A(f"buffer_store_dword v{acc}, v{vSt}, {WS}, s27 offen sc1")
    if opts.get("memlog"):
        A(f"s_mul_i32 s20, s30, 10240")
        A(f"s_add_u32 s20, s20, {DBGW + 0x200000}")
        A(f"buffer_store_dword v{acc}, v{vSt}, {WS}, s20 offen")
    A(f"buffer_store_dword v{vM1}, v{vSt}, {WS}, s28 offen sc1")
    if gc.STAMP:
        A("s_lshl_b32 s97, s30, 2"); gc.stamp(A, 8, 100, 97)
    A.label("C_next")
    A("s_mov_b32 s28, s27")
    ring_next(A, 27, MEMR, MEM_SLOT)
    ring_next(A, 37, PR, P_SLOT)
    ring_next(A, 38, VOMR, VOM_SLOT)
    A("s_add_u32 s30, s30, 1")
    A("s_cmp_lt_u32 s30, 63")
    A("s_cbranch_scc1 C_loop")
    A("s_endpgm")

def gen_b(A, opts):
    A.label("R_B")
    make_srd(A, SR1, 32, 640*12288)
    make_srd(A, SR2, 40, 6144*1280)
    A(f"s_mul_i32 s24, s{SUNIT}, 384")
    A(f"s_mul_i32 s25, s{SUNIT}, {192*1280}")
    WL = 0; MEMB = 61440; VB = MEMB + 10240; STG = 61440
    WL = 0; WLW = 30720; MEMB = 4*WLW; VB = MEMB + 10240
    vG, vGL, vMA, vWL, vIdx, vVW, vVA, vSt, vZ, vMx, vM1 = 2, 3, 4, 5, 6, 7, 8, 9, 10, 11, 12
    acc = 16; MF = 28; VF = 40; OA = 52; RB = 92; ob = 140
    def wo(tl, kb):
        i = (tl*3 + kb)*8
        return ('a', 240 + i) if i < 16 else ('v', 152 + i - 16)
    def rg(t, off, n): return (a if t[0] == 'a' else v)(t[1] + off, n)
    ta = [20, 21, 22]; tb = list(range(24, 34))
    A("s_waitcnt lgkmcnt(0)")
    wl_addr_setup(A, VL, 14, 12288, 3, ta, 3, True, 40)
    wl_addr_setup(A, VL, 15, 1280, 10, tb, 10, True, 40)
    A(f"v_lshlrev_b32 v{vWL}, 4, v{VL}")
    A(f"s_mul_i32 s20, s{SWAVE}, {WLW}")
    A(f"v_add_u32 v{vWL}, s20, v{vWL}")
    bt = []
    for b in range(5):
        tiles = [(ta[tl], (lambda kbl, u, tl=tl, b=b: a((tl*20 + 4*b + kbl)*4 + 2*u, 2))) for tl in range(3)]
        bt.append(dict(srd=SR1, sbase=24, row0=128*b, stride=12288, NL=3, nkb=4, vdma=14, tiles=tiles))
    for b in range(6):
        tiles = []
        for tl in range(10):
            if tl >= 5:
                tiles.append((tb[tl], (lambda kbl, u, tl=tl, b=b: rg(wo(tl-5, b//2), 4*(b%2) + 2*u, 2))))
            else:
                tiles.append((tb[tl], (lambda kbl, u, tl=tl, b=b: v(56 + ((b % 4)*5 + tl)*4 + 2*u, 2))))
        bt.append(dict(srd=SR2, sbase=25, row0=32*b, stride=1280, NL=10, nkb=1, vdma=15, tiles=tiles))
    load_weights(A, bt[:9], 3, 49152, 0, 40, 26)
    def wr(bs):
        for b in bs:
            for tl in range(5):
                A(f"ds_write_b128 v{vWL}, {v(56 + ((b % 4)*5 + tl)*4, 4)} offset:{(tl*6 + b)*1024}")
        A("s_waitcnt lgkmcnt(0)")
    wr(range(4))
    bt[9]['post'] = lambda: (wr([4]), A("s_barrier"))
    bt[10]['post'] = lambda: wr([5])
    load_weights(A, bt[9:10], 2, 0, MEMB, 40, 26)
    load_weights(A, bt[10:11], 2, 0, MEMB, 40, 26)
    gc.stamp(A, 1, 100)
    lane_fields(A, 40, 41, 42)
    sparse_addr(A, vMA, MEMB, 40, 41, 42, 43)
    A(f"v_add_u32 v{vVA}, {VB - MEMB}, v{vMA}")
    idx_reg(A, vIdx, 43)
    A(f"""v_lshlrev_b32 v{vG}, 4, v{VL}
    s_mul_i32 s20, s{SWAVE}, 5120
    v_add_u32 v{vG}, s20, v{vG}
    v_add_u32 v{vGL}, {MEMB}, v{vG}
    v_and_b32 v43, 15, v{VL}
    v_lshlrev_b32 v{vVW}, 4, v43
    v_and_b32 v44, 1, v40
    v_lshl_add_u32 v{vVW}, v44, 3, v{vVW}
    v_mov_b32 v{vSt}, v{vVW}
    v_lshrrev_b32 v44, 1, v40
    v_lshl_add_u32 v{vVW}, v44, 2, v{vVW}
    s_mul_i32 s20, s{SWAVE}, 768
    s_add_u32 s20, s20, {VB}
    v_add_u32 v{vVW}, s20, v{vVW}
    v_mul_u32_u24 v44, {5*8192}, v44
    v_add_u32 v{vSt}, v{vSt}, v44
    s_mul_i32 s20, s{SWAVE}, {10*8192}
    s_lshl_b32 s21, s{SUNIT}, 8
    s_add_u32 s20, s20, s21
    v_add_u32 v{vSt}, s20, v{vSt}
    v_mov_b32 v{vZ}, 0
    v_mov_b32 v{vM1}, -1
    v_mov_b32 v{vM1+1}, -1
    s_mov_b32 s24, {MEMR}
    s_mov_b32 s25, {VOMR}
    s_mov_b32 s26, {VOMR + 3*VOM_SLOT}
    s_mov_b32 s27, {VOMC}
    s_lshl_b32 s29, s{SUNIT}, 4
    s_lshl_b32 s20, s{SWAVE}, 2
    s_add_u32 s29, s29, s20
    s_add_u32 s29, s29, {FL_B}
    s_mov_b32 s30, 0
    s_mov_b32 s32, 0""")
    def rdl(n):
        for hf in range(2):
            A(f"ds_read_b128 {v(RB + (n % 6)*8 + 4*hf, 4)}, v{vWL} offset:{(n*2 + hf)*1024}")
    A.label("B_loop")
    for i in range(12): A(f"v_mov_b32 v{acc+i}, 0")
    for i in range(40): A(f"v_mov_b32 v{OA+i}, 0")
    for n in range(6): rdl(n)
    A(f"s_cmp_lt_u32 s{SWAVE}, 2")
    A("s_cbranch_scc0 B_b1")
    gather_mem(A, [MF, MF+4, MF+8, VF, VF+4], vG, vGL, 24, vMx, 32, "B")
    A.label("B_b1")
    A("s_waitcnt lgkmcnt(0)")
    A("s_barrier")
    def rdm(kb):
        for u in range(2):
            A(f"ds_read_b64_tr_b16 {v(MF + (kb % 3)*4 + 2*u, 2)}, v{vMA} offset:{kb*1024 + u*256}")
    rdm(0); rdm(1)
    for kb in range(10):
        if kb + 2 < 10: rdm(kb + 2)
        A(f"s_waitcnt lgkmcnt({2*min(2, 9-kb)})")
        for tl in range(3):
            A(f"{SM} {v(acc+4*tl,4)}, {v(MF+(kb%3)*4,4)}, {a((tl*10+kb)*8,8)}, v{vIdx}")
    A.nop(4)
    for tl in range(3):
        c = acc + 4*tl
        A.nop(2)
        A(f"v_permlane32_swap_b32 v{c}, v{c+2}")
        A(f"v_permlane32_swap_b32 v{c+1}, v{c+3}")
        A("s_nop 0")
        A(f"v_add_f32 v{c}, v{c}, v{c+2}")
        A(f"v_add_f32 v{c+1}, v{c+1}, v{c+3}")
        A(f"v_cvt_pk_bf16_f32 v{c}, v{c}, v{c+1}")
        A(f"ds_write_b32 v{vVW}, v{c} offset:{tl*256}")
    A("s_waitcnt lgkmcnt(0)")
    A("s_barrier")
    for kb in range(3):
        for u in range(2):
            A(f"ds_read_b64_tr_b16 {v(VF + kb*4 + 2*u, 2)}, v{vVA} offset:{kb*1024 + u*256}")
    def epi(p):
        x = OA + 8*p; y = x + 4; o = ob + 2*(p % 2)
        for r in range(4): A(f"v_permlane32_swap_b32 v{x+r}, v{y+r}")
        for r in range(4): A(f"v_add_f32 v{x+r}, v{x+r}, v{y+r}")
        A(f"v_cvt_pk_bf16_f32 v{x}, v{x}, v{x+1}")
        A(f"v_cvt_pk_bf16_f32 v{x+1}, v{x+2}, v{x+3}")
        A(f"s_add_u32 s20, s25, {p*8192}")
        A(f"buffer_store_dwordx2 {v(x,2)}, v{vSt}, {WS}, s20 offen sc1")
    pend = []
    for p in range(5):
        for kb in range(3):
            n = 3*p + kb
            if p == 0: A(f"s_waitcnt lgkmcnt({4 - 2*kb + 2*max(0, kb)})" if False else f"s_waitcnt lgkmcnt({[4,4,4][kb]})")
            elif n >= 6: A(f"s_waitcnt lgkmcnt({2*min(5, 14 - n)})")
            A(f"{SM} {v(OA+8*p,4)}, {v(VF+4*kb,4)}, {v(RB+(n%6)*8,8)}, v{vIdx}")
            A(f"{SM} {v(OA+8*p+4,4)}, {v(VF+4*kb,4)}, {rg(wo(p,kb),0,8)}, v{vIdx}")
            if n + 6 < 15: rdl(n + 6)
            if kb == 1 and p > 0: epi(p - 1)
    A.nop(8)
    epi(4)
    if gc.STAMP:
        A("s_lshl_b32 s97, s30, 2"); gc.stamp(A, 8, 144, 97)
    for p in range(5):
        A(f"s_add_u32 s20, s27, {p*8192}")
        A(f"buffer_store_dwordx2 {v(OA+8*p,2)}, v{vSt}, {WS}, s20 offen sc1")
    for p in range(5):
        A(f"s_add_u32 s20, s26, {p*8192}")
        A(f"buffer_store_dwordx2 {v(vM1,2)}, v{vSt}, {WS}, s20 offen sc1")
    A("s_add_u32 s30, s30, 1")
    A("s_waitcnt vmcnt(5)")
    A(f"v_mov_b32 v{vMx}, s30")
    A(f"buffer_store_dword v{vMx}, v{vZ}, {WS}, s29 offen sc1")
    A("s_mov_b32 s26, s25")
    ring_next(A, 24, MEMR, MEM_SLOT)
    ring_next(A, 25, VOMR, VOM_SLOT)
    A(f"s_add_u32 s27, s27, {VOM_SLOT}")
    A("s_cmp_lt_u32 s30, 64")
    A("s_cbranch_scc1 B_loop")
    A("s_endpgm")
exec(open("gen_a.py").read())
```

```python
from gen_common import *
import gen_common as gc
VL = 1

def spin_guard(A, sc, lab_fail):
    A(f"s_add_u32 s{sc}, s{sc}, 1")
    A(f"s_cmp_gt_u32 s{sc}, {SPIN_MAX}")
    A(f"s_cbranch_scc1 {lab_fail}")

def gen_t1(A, nxt):
    A.label("R_T1")
    A(f"""s_lshr_b32 s20, s{SUNIT}, 5
    s_lshl_b32 s21, s20, 3
    s_add_u32 s21, s21, 16
    s_cmp_eq_u32 s20, 3
    s_cselect_b32 s21, 64, s21
    s_load_dwordx2 {s(SR1,2)}, s[0:1], s21
    s_mov_b32 s{SR1+2}, {640*12288}
    s_cselect_b32 s{SR1+2}, {640*3072}, s{SR1+2}
    s_mov_b32 s{SR1+3}, 0x20000
    s_and_b32 s24, s{SUNIT}, 31
    s_mul_i32 s24, s24, 384""")
    make_srd(A, SR2, 72, 3072)
    vdma, ta = 2, [3, 4, 5]
    bias = 100
    for i in range(12): A(f"v_mov_b32 v{bias+i}, 0")
    A("s_waitcnt lgkmcnt(0)")
    A(f"s_cmp_eq_u32 s20, 3")
    A("s_cbranch_scc1 T1_ffn_w")
    for ffn in (0, 1):
        stride = 3072 if ffn else 12288
        if ffn:
            A.label("T1_ffn_w")
            A(f"""v_lshrrev_b32 v8, 4, v{VL}
            v_lshlrev_b32 v8, 3, v8
            s_mul_i32 s21, s{SWAVE}, 96
            s_add_u32 s21, s21, s24""")
            for tl in range(3):
                A(f"buffer_load_dwordx2 {v(10+2*tl,2)}, v8, {s(SR2,4)}, s21 offen offset:{32*tl}")
            A("s_waitcnt vmcnt(0)")
            for i in range(6):
                A(f"v_lshlrev_b32 v{bias+2*i}, 16, v{10+i}")
                A(f"v_and_b32 v{bias+2*i+1}, 0xffff0000, v{10+i}")
        wl_addr_setup(A, VL, vdma, stride, 3, ta, 3, False, 8)
        bt = []
        for b in range(5):
            tiles = [(ta[tl], (lambda kbl, u, tl=tl, b=b: a((tl*20 + 4*b + kbl)*4 + 2*u, 2))) for tl in range(3)]
            bt.append(dict(srd=SR1, sbase=24, row0=128*b, stride=stride, NL=3, nkb=4, vdma=vdma, tiles=tiles))
        load_weights(A, bt, 3, 49152, 0, 8, 26)
        if not ffn: A("s_branch T1_main")
    A.label("T1_main")
    gc.stamp(A, 1)
    A(f"""v_lshlrev_b32 v6, 4, v{VL}
    s_mul_i32 s20, s{SWAVE}, 10240
    v_add_u32 v2, s20, v6
    v_lshrrev_b32 v7, 5, v{VL}
    v_lshlrev_b32 v4, 8, v7
    v_and_b32 v7, 15, v{VL}
    v_lshl_add_u32 v4, v7, 4, v4
    v_bfe_u32 v7, v{VL}, 4, 1
    v_lshl_add_u32 v4, v7, 3, v4
    s_mul_i32 s21, s{SWAVE}, 1536
    v_add_u32 v4, s21, v4
    s_mov_b32 s25, s20
    s_mov_b32 s26, {XNF}
    s_mov_b32 s27, 0
    s_mul_i32 s28, s{SUNIT}, {64*12288}
    s_add_u32 s28, s28, {T1O}
    s_lshl_b32 s29, s{SUNIT}, 4
    s_lshl_b32 s20, s{SWAVE}, 2
    s_add_u32 s29, s29, s20
    s_add_u32 s29, s29, {FL_T1}
    s_mov_b32 s30, 0
    s_mov_b32 s31, 0
    v_mov_b32 v7, 0""")
    def dma():
        A("s_add_u32 s20, s27, s25")
        for i in range(10):
            A(f"s_add_u32 m0, s20, {i*1024}")
            A(f"s_add_u32 s21, s26, {i*1024}")
            A(f"buffer_load_dwordx4 v2, {s(SWS,4)}, s21 offen lds")
        A("s_add_u32 s26, s26, 40960")
        A("s_add_u32 s27, s27, 40960")
        A("s_cmp_eq_u32 s27, 122880")
        A("s_cselect_b32 s27, 0, s27")
    dma(); dma()
    A("s_waitcnt vmcnt(10)")
    A.label("T1_loop")
    A("s_barrier")
    A("v_add_u32 v3, s31, v6")
    acc = 16; fr = 40; NF = 6; PD = 4
    order = [(kb, t) for kb in range(20) for t in range(2)]
    def rd(i):
        kb, t = order[i]
        A(f"ds_read_b128 {v(fr + 4*(i%NF), 4)}, v3 offset:{(t*20+kb)*1024}")
    for i in range(PD): rd(i)
    dma()
    for i, (kb, t) in enumerate(order):
        if i + PD < 40: rd(i + PD)
        A(f"s_waitcnt lgkmcnt({min(PD, 39 - i)})")
        for tl in range(3):
            c = v(acc + (tl*2+t)*4, 4)
            src = v(bias + 4*tl, 4) if kb == 0 else c
            A(f"v_mfma_f32_16x16x32_bf16 {c}, {a((tl*20+kb)*4,4)}, {v(fr+4*(i%NF),4)}, {src}")
        if i == 20:
            A("s_waitcnt vmcnt(10)")
            A("v_mov_b32 v5, s30")
            A(f"buffer_store_dword v5, v7, {s(SWS,4)}, s29 offen sc1")
    A(f"s_cmp_lt_u32 s{SUNIT}, 96")
    A("s_nop 4")
    A("s_cbranch_scc1 T1_st")
    for i in range(24): A(f"v_max_f32 v{acc+i}, 0, v{acc+i}")
    for i in range(12): A(f"v_pk_mul_f32 {v(acc+2*i,2)}, {v(acc+2*i,2)}, {v(acc+2*i,2)}")
    A.label("T1_st")
    A("s_add_u32 s20, s28, 6144")
    A("s_nop 1")
    for t in range(2):
        for tl in range(3):
            c = acc + (tl*2+t)*4; o = 64 + (tl*2+t)*2
            A(f"v_cvt_pk_bf16_f32 v{o}, v{c}, v{c+1}")
            A(f"v_cvt_pk_bf16_f32 v{o+1}, v{c+2}, v{c+3}")
            A(f"buffer_store_dwordx2 {v(o,2)}, v4, {s(SWS,4)}, s{20 if t else 28} offen offset:{tl*512} sc1")
    A("""s_add_u32 s28, s28, 12288
    s_add_u32 s31, s31, 40960
    s_cmp_eq_u32 s31, 122880
    s_cselect_b32 s31, 0, s31
    s_add_u32 s30, s30, 1
    s_cmp_lt_u32 s30, 64
    s_cbranch_scc1 T1_loop
    s_waitcnt vmcnt(0)
    v_mov_b32 v5, s30""")
    A(f"buffer_store_dword v5, v7, {s(SWS,4)}, s29 offen sc1")
    gc.stamp(A, 2)
    A(f"s_branch {nxt}")

def gen_t2(A, nxt):
    A.label("R_T2")
    A(f"""s_cmp_ge_u32 s{SUNIT}, 32
    s_cselect_b32 s21, 80, 40
    s_load_dwordx2 {s(SR1,2)}, s[0:1], s21
    s_mov_b32 s{SR1+2}, {6144*1280}
    s_cselect_b32 s{SR1+2}, {1536*1280}, s{SR1+2}
    s_mov_b32 s{SR1+3}, 0x20000
    s_and_b32 s24, s{SUNIT}, 31
    s_mul_i32 s24, s24, {192*1280}
    s_waitcnt lgkmcnt(0)""")
    vdma = 2; ta = list(range(20, 30))
    wl_addr_setup(A, VL, vdma, 1280, 10, ta, 10, False, 8)
    bt = []
    for b in range(6):
        tiles = [(ta[tl], (lambda kbl, u, tl=tl, b=b: a((tl*6 + b)*4 + 2*u, 2))) for tl in range(10)]
        bt.append(dict(srd=SR1, sbase=24, row0=32*b, stride=1280, NL=10, nkb=1, vdma=vdma, tiles=tiles))
    load_weights(A, bt, 3, 40960, 0, 8, 26)
    gc.stamp(A, 1)
    A(f"""v_lshlrev_b32 v2, 4, v{VL}
    v_and_b32 v4, 15, v{VL}
    v_lshlrev_b32 v4, 6, v4
    v_lshrrev_b32 v5, 4, v{VL}
    v_lshl_add_u32 v4, v5, 4, v4
    s_mul_i32 s20, s{SWAVE}, {10*40960}
    v_add_u32 v4, s20, v4
    v_mov_b32 v7, 0
    s_add_u32 s20, s{SUNIT}, 64
    s_mul_i32 s26, s20, {64*12288}
    s_add_u32 s26, s26, {T1O}
    s_lshl_b32 s27, s20, 4
    s_add_u32 s27, s27, {FL_T1}
    s_lshl_b32 s28, s{SUNIT}, 10
    s_add_u32 s28, s28, {VOX}
    s_lshl_b32 s29, s{SUNIT}, 4
    s_lshl_b32 s20, s{SWAVE}, 2
    s_add_u32 s29, s29, s20
    s_add_u32 s29, s29, {FL_T2}
    s_mov_b32 s30, 0
    s_mov_b32 s32, 0""")
    FB = [32, 80]; acc = 128; ob = 160; fl = 8
    def ld(p):
        for i in range(12):
            A(f"buffer_load_dwordx4 {v(FB[p]+4*i,4)}, v2, {s(SWS,4)}, s{26 if i < 4 else (20 if i < 8 else 21)} offen offset:{(i%4)*1024} sc1")
            if i == 0:
                A("s_add_u32 s20, s26, 4096"); A("s_add_u32 s21, s26, 8192")
        A("s_add_u32 s26, s26, 12288")
    def flmin(dst):
        A(f"v_min_u32 v{fl}, v{fl}, v{fl+1}")
        A(f"v_min3_u32 v{fl}, v{fl}, v{fl+2}, v{fl+3}")
        A("s_nop 0")
        A(f"v_readfirstlane_b32 s{dst}, v{fl}")
    def slow(p, need_reg):
        L = A.newlabel("T2sp"); Lx = A.newlabel("T2sx")
        A.label(L)
        A(f"buffer_load_dwordx4 {v(fl,4)}, v7, {s(SWS,4)}, s27 offen sc1")
        A("s_waitcnt vmcnt(0)")
        flmin(22)
        A(f"s_cmp_gt_u32 s22, s{need_reg}")
        A(f"s_cbranch_scc1 {Lx}")
        A("s_sleep 2")
        spin_guard(A, 32, Lx)
        A(f"s_branch {L}")
        A.label(Lx)
        ld(p)
        A("s_waitcnt vmcnt(0)")
    slow(0, 30)
    A.label("T2_loop")
    for p in range(2):
        A("s_waitcnt vmcnt(6)")
        A(f"buffer_load_dwordx4 {v(fl,4)}, v7, {s(SWS,4)}, s27 offen sc1")
        def epi(tp):
            for tl in (2*tp, 2*tp+1):
                c = acc + ((tp % 2)*2 + tl % 2)*8; o = ob + (tl % 4)*4
                for k in range(4): A(f"v_cvt_pk_bf16_f32 v{o+k}, v{c+2*k}, v{c+2*k+1}")
                A(f"s_add_u32 s20, s28, {tl*40960}")
                A(f"buffer_store_dwordx4 {v(o,4)}, v4, {s(SWS,4)}, s20 offen sc1")
        for tp in range(5):
            for kb in range(6):
                for tl in (2*tp, 2*tp+1):
                    for u in range(2):
                        c = v(acc + ((tp % 2)*2 + tl % 2)*8 + 4*u, 4)
                        A(f"v_mfma_f32_16x16x32_bf16 {c}, {v(FB[p]+(u*6+kb)*4,4)}, {a((tl*6+kb)*4,4)}, {'0' if kb == 0 else c}")
                if kb == 2 and tp > 0: epi(tp - 1)
            if tp == 2:
                A("s_waitcnt vmcnt(4)")
                A("v_mov_b32 v5, s30")
                A(f"buffer_store_dword v5, v7, {s(SWS,4)}, s29 offen sc1")
                flmin(22)
                A("s_add_u32 s23, s30, 1")
                A("s_cmp_gt_u32 s22, s23")
                A("s_cselect_b32 s31, 1, 0")
                Ls = A.newlabel("T2np")
                A(f"s_cbranch_scc0 {Ls}")
                ld(1 - p)
                A.label(Ls)
        A.nop(8)
        epi(4)
        A(f"""s_add_u32 s28, s28, {1600*1024}
        s_add_u32 s30, s30, 1
        s_cmp_eq_u32 s30, 64
        s_cbranch_scc1 T2_done
        s_cmp_eq_u32 s31, 1""")
        Lf = A.newlabel("T2f")
        A(f"s_cbranch_scc1 {Lf}")
        A("s_waitcnt vmcnt(0)")
        A("v_mov_b32 v5, s30")
        A(f"buffer_store_dword v5, v7, {s(SWS,4)}, s29 offen sc1")
        slow(1 - p, 30)
        A.label(Lf)
    A("s_branch T2_loop")
    A.label("T2_done")
    A("s_waitcnt vmcnt(0)")
    A("v_mov_b32 v5, s30")
    A(f"buffer_store_dword v5, v7, {s(SWS,4)}, s29 offen sc1")
    gc.stamp(A, 2)
    A(f"s_branch {nxt}")
```
